```python
import torch

def _softmax(x, axis=-1):
    return torch.softmax(x, dim=axis)
def _gelu(x):
    return torch.nn.functional.gelu(x, approximate="tanh")
def _silu(x):
    return torch.nn.functional.silu(x)
def _sigmoid(x):
    return torch.sigmoid(x)
def _layernorm(x, axis=-1, eps=1e-5):
    m = x.mean(dim=axis, keepdim=True)
    v = x.var(dim=axis, keepdim=True, unbiased=False)
    return (x - m) / torch.sqrt(v + eps)
def _scatter_add(tgt, idx, src, axis=0):
    return tgt.clone().index_add_(axis, idx, src)
def _segment_sum(src, seg, n):
    out = torch.zeros((n,) + src.shape[1:], dtype=src.dtype)
    return out.index_add_(0, seg, src)
def _pad(x, pw):
    flat = tuple(v for pair in reversed(pw) for v in pair)
    return torch.nn.functional.pad(x, flat)

kernel_name = 'interleave_layers__linear_kernel_hedgehog__glu_gated_swiglu__prompt'

def setup_inputs():

    _w = (lambda a: (lambda t: t.to(torch.bfloat16) if t.is_floating_point() else t)(torch.as_tensor(a)))
    def _A_setup():
        B, S, D, H = 1, 2048, 512, 32
        Dh = D // H
        return {
            "x": _w((lambda *s: torch.randn(*s, dtype=torch.bfloat16) * 0.05)(B, S, D)),
            "wqkv": _w((lambda *s: torch.randn(*s, dtype=torch.bfloat16) * 0.4)(D, 3 * D)),
            "w_phi": _w((lambda *s: torch.randn(*s, dtype=torch.bfloat16) * 0.4)(H, Dh, Dh) * (Dh ** -0.5)),
            "wo": _w((lambda *s: torch.randn(*s, dtype=torch.bfloat16) * 0.05)(D, D)),
        }
    _A_in = _A_setup()

    def _B_setup():
        B, S, D, F = 1, 2048, 512, 1792
        return {
            "x": _w((lambda *s: torch.randn(*s, dtype=torch.bfloat16) * 0.05)(B, S, D)),
            "w1": _w((lambda *s: torch.randn(*s, dtype=torch.bfloat16) * 0.8)(D, F) * (2.0 / D) ** 0.5),
            "w3": _w((lambda *s: torch.randn(*s, dtype=torch.bfloat16) * 0.8)(D, F) * (2.0 / D) ** 0.5),
            "w2": _w((lambda *s: torch.randn(*s, dtype=torch.bfloat16) * 0.8)(F, D) * (2.0 / F) ** 0.5),
        }
    _B_in = _B_setup()

    return {
        "A_x": _A_in["x"],
        "A_wqkv": _A_in["wqkv"],
        "A_w_phi": _A_in["w_phi"],
        "A_wo": _A_in["wo"],
        "B_x": _B_in["x"],
        "B_w1": _B_in["w1"],
        "B_w3": _B_in["w3"],
        "B_w2": _B_in["w2"],
    }

def reference(A_x, A_wqkv, A_w_phi, A_wo, B_x, B_w1, B_w3, B_w2):
    def _A_ref(x, wqkv, w_phi, wo):
        B, S, D = x.shape
        H = 32; Dh = D // H
        qkv = (lambda x, *d: x.permute(*d))((x @ wqkv).reshape(B, S, 3, H, Dh), 2, 0, 3, 1, 4)
        q, k, v = qkv[0], qkv[1], qkv[2]
        pq = torch.einsum("bhsd,hdf->bhsf", q, w_phi)
        pk = torch.einsum("bhsd,hdf->bhsf", k, w_phi)
        phi_q = torch.concatenate([_softmax(pq, axis=-1), _softmax(-pq, axis=-1)], axis=-1)
        phi_k = torch.concatenate([_softmax(pk, axis=-1), _softmax(-pk, axis=-1)], axis=-1)
        kv = torch.einsum("bhsf,bhsd->bhfd", phi_k, v)
        z  = torch.einsum("bhsf->bhf", phi_k)
        num = torch.einsum("bhqf,bhfd->bhqd", phi_q, kv)
        den = torch.einsum("bhqf,bhf->bhq", phi_q, z)[..., None] + 1e-6
        o = num / den
        return (lambda x, *d: x.permute(*d))(o, 0, 2, 1, 3).reshape(B, S, D) @ wo

    def _B_ref(x, w1, w3, w2):
        gate = torch.einsum("bsd,df->bsf", x, w1)
        up = torch.einsum("bsd,df->bsf", x, w3)
        h = _silu(gate) * up
        out = torch.einsum("bsf,fd->bsd", h, w2)
        return out

    x = A_x
    x = x + _A_ref(_layernorm(x, axis=-1), A_wqkv, A_w_phi, A_wo)
    x = x + _B_ref(_layernorm(x, axis=-1), B_w1, B_w3, B_w2)
    x = x + _A_ref(_layernorm(x, axis=-1), A_wqkv, A_w_phi, A_wo)
    x = x + _B_ref(_layernorm(x, axis=-1), B_w1, B_w3, B_w2)
    return x
```

```python
import re

def v(i, n=1): return "v%d" % i if n == 1 else "v[%d:%d]" % (i, i + n - 1)
def a(i, n=1): return "a%d" % i if n == 1 else "a[%d:%d]" % (i, i + n - 1)
def s(i, n=1): return "s%d" % i if n == 1 else "s[%d:%d]" % (i, i + n - 1)

_reg_re = re.compile(r"^-?\|?(?:neg\(|abs\()?([vas])(?:(\d+)|\[(\d+):(\d+)\])\)?\|?$")
def regs_of(tok):
    tok = tok.strip()
    if tok in ("vcc",): return [("s", 106), ("s", 107)]
    if tok == "vcc_lo": return [("s", 106)]
    if tok == "vcc_hi": return [("s", 107)]
    if tok == "exec": return [("s", 126), ("s", 127)]
    if tok == "exec_lo": return [("s", 126)]
    if tok == "exec_hi": return [("s", 127)]
    if tok == "m0": return [("s", 124)]
    m = _reg_re.match(tok)
    if not m: return []
    k = m.group(1)
    if m.group(2) is not None: return [(k, int(m.group(2)))]
    return [(k, i) for i in range(int(m.group(3)), int(m.group(4)) + 1)]

TRANS = ("v_exp_f32", "v_log_f32", "v_rcp_f32", "v_rsq_f32", "v_sqrt_f32", "v_sin_f32", "v_cos_f32")

class Ins:
    __slots__ = ("text", "mn", "rd", "wr", "kind", "passes", "cD", "srcC", "srcAB", "isdma", "wide_store", "dpp", "label", "nst")
    def __init__(self, text):
        self.text = text
        self.label = False
        self.cD = None; self.srcC = []; self.srcAB = []; self.passes = 0
        self.isdma = False; self.wide_store = []; self.dpp = False; self.nst = 1
        t = text.split(";")[0].strip()
        if t.endswith(":"):
            self.label = True; self.mn = ""; self.rd = []; self.wr = []; self.kind = "label"; self.nst = 0; return
        if t.startswith("."):
            self.mn = ""; self.rd = []; self.wr = []; self.kind = "dir"; self.nst = 0; return
        parts = t.split(None, 1)
        mn = parts[0]; self.mn = mn
        rest = parts[1] if len(parts) > 1 else ""
        ops = [o.strip() for o in rest.split(",")] if rest else []
        mods = ""
        if ops:
            lp = ops[-1].split(None, 1)
            ops[-1] = lp[0]
            if len(lp) > 1: mods = lp[1]
        t2 = re.sub(r"\b(op_sel|op_sel_hi|neg_lo|neg_hi|cbsz|abid|blgp):\[?[^\s\]]*\]?", "", rest)
        ops = [o.strip() for o in t2.split(",")] if t2.strip() else []
        mods = ""
        if ops:
            lp = ops[-1].split(None, 1)
            ops[-1] = lp[0]
            if len(lp) > 1: mods = lp[1]
        R = lambda i: regs_of(ops[i]) if i < len(ops) else []
        allr = lambda i0: [r for i in range(i0, len(ops)) for r in regs_of(ops[i])]
        rd, wr = [], []
        if mn.startswith("v_mfma"):
            self.kind = "mfma"
            wr = R(0); rd = R(1) + R(2) + R(3)
            self.srcAB = R(1) + R(2); self.srcC = R(3)
            self.passes = 8 if "32x32" in mn else 4
        elif mn.startswith("v_cmp"):
            self.kind = "valu"; wr = R(0); rd = allr(1)
            if mn.startswith("v_cmpx"): wr += regs_of("exec")
        elif mn.startswith("v_readfirstlane") or mn.startswith("v_readlane"):
            self.kind = "valu"; wr = R(0); rd = allr(1)
        elif mn.startswith("v_permlane") and "swap" in mn:
            self.kind = "valu"; wr = R(0) + R(1); rd = R(0) + R(1)
        elif mn.startswith(("v_fmac", "v_dot2c", "v_pk_fmac", "v_writelane")):
            self.kind = "valu"; wr = R(0); rd = R(0) + allr(1)
        elif mn.startswith(("v_add_co", "v_sub_co", "v_subrev_co", "v_addc_co", "v_subb_co")):
            self.kind = "valu"; wr = R(0) + R(1); rd = allr(2)
        elif mn.startswith("v_cndmask"):
            self.kind = "valu"; wr = R(0); rd = allr(1)
            if len(ops) == 3: rd += regs_of("vcc")
        elif mn.startswith("v_nop"):
            self.kind = "valu"
        elif mn.startswith("v_"):
            self.kind = "valu"; wr = R(0); rd = allr(1)
            if "dpp" in mn or "row_" in mods or "quad_perm" in mods: self.dpp = True
            if mn.startswith("v_mov_b32_dpp") or self.dpp: rd += R(0)
        elif mn.startswith("buffer_load") or mn.startswith("global_load"):
            self.kind = "vmem"
            if re.search(r"\blds\b", mods) or "load_lds" in mn:
                self.isdma = True; rd = allr(0) + regs_of("m0")
            else:
                wr = R(0); rd = allr(1)
                if "d16" in mn: rd += R(0)
        elif mn.startswith("buffer_store") or mn.startswith("global_store"):
            self.kind = "vmem"; rd = allr(0)
            if "x4" in mn or "x3" in mn:
                self.wide_store = R(0) if mn.startswith("buffer") else R(1)
        elif mn.startswith("buffer_atomic") or mn.startswith("global_atomic"):
            self.kind = "vmem"; rd = allr(0)
            if re.search(r"\bsc0\b", mods): wr = R(0)
        elif mn.startswith("buffer_"):
            self.kind = "vmem"
        elif mn.startswith("ds_read") or mn.startswith("ds_bpermute") or mn.startswith("ds_swizzle"):
            self.kind = "ds"; wr = R(0); rd = allr(1)
        elif mn.startswith("ds_write"):
            self.kind = "ds"; rd = allr(0)
        elif mn.startswith("s_load") or mn.startswith("s_buffer_load") or mn.startswith("s_memtime"):
            self.kind = "smem"; wr = R(0); rd = allr(1)
        elif mn == "s_nop":
            self.kind = "nop"; self.nst = int(ops[0], 0) + 1
        elif mn in ("s_waitcnt", "s_barrier", "s_branch", "s_endpgm", "s_setprio", "s_sleep") or mn.startswith("s_cbranch"):
            self.kind = "ctl"
            if mn == "s_cbranch_vccnz" or mn == "s_cbranch_vccz": rd = regs_of("vcc")
        elif mn.startswith("s_cmp") or mn.startswith("s_bitcmp"):
            self.kind = "salu"; rd = allr(0)
        elif mn.startswith("s_"):
            self.kind = "salu"; wr = R(0); rd = allr(1)
            if mn.startswith(("s_addk", "s_mulk")): rd += R(0)
        else:
            raise ValueError("unknown instr: " + text)
        self.rd = rd; self.wr = wr

class Asm:
    def __init__(self):
        self.out = []
        self.hist = []
        self.vmq = []
        self.lgq = []
        self.vm_issued = 0
        self.lg_issued = 0
        self.nnops = 0
        self.ninstr = 0
        self.smem_pending = False
    def _need(self, I):
        need = 0
        dist = 0
        rdv = set(r for r in I.rd if r[0] in "va"); wrv = set(r for r in I.wr if r[0] in "va")
        rds = set(r for r in I.rd if r[0] == "s")
        for P in reversed(self.hist):
            req = 0
            pw = set(P.wr)
            pwv = set(r for r in P.wr if r[0] in "va"); pws = set(r for r in P.wr if r[0] == "s")
            if P.kind == "valu" and P.mn.startswith("v_dot"):
                if pwv & (rdv | wrv):
                    if I.mn == P.mn and set(I.wr) == pwv and not (pwv & set(I.rd[len(I.wr):])): pass
                    else: req = max(req, 3)
            if P.kind == "valu":
                if I.kind == "mfma" and (pwv & rdv): req = max(req, 2)
                if I.kind == "valu":
                    if P.mn.startswith(TRANS) and not I.mn.startswith(TRANS) and (pwv & rdv): req = max(req, 1)
                    if P.mn.startswith(TRANS) and I.mn.startswith(TRANS) and (pwv & rdv): req = max(req, 1)
                    if I.mn.startswith("v_permlane") and (pwv & rdv): req = max(req, 2)
                    if I.dpp and (pwv & rdv): req = max(req, 2)
                    if I.mn.startswith(("v_readfirstlane", "v_readlane")) and (pwv & rdv): req = max(req, 1)
                    if (pws & rds): req = max(req, 2)
                    if I.mn.startswith(("v_readlane", "v_writelane")) and (pws & rds): req = max(req, 4)
                    if "cvt_pk" in P.mn and (pwv & rdv): req = max(req, 0)
                if I.kind == "vmem" and (pws & rds): req = max(req, 5)
                if I.kind in ("salu", "ctl") and (pws & rds): req = max(req, 1)
                if ("s", 126) in pws and I.kind == "mfma": req = max(req, 4)
            if P.kind == "mfma":
                big = P.passes == 8
                D = pwv
                if I.kind == "mfma":
                    c = set(I.srcC)
                    if D & set(I.srcAB): req = max(req, 12 if big else 8)
                    if D & c:
                        if c == D and I.passes == P.passes: pass
                        else: req = max(req, 10 if big else 6)
                    if (D & wrv) and not (set(I.wr) == D and I.passes == P.passes): req = max(req, 10 if big else 6)
                elif I.kind in ("valu", "vmem", "ds"):
                    if D & (rdv | wrv): req = max(req, 12 if big else 8)
                if I.kind == "valu" and (set(P.srcC) & wrv): req = max(req, 7 if big else 3)
            if P.kind == "salu":
                if I.isdma and ("s", 124) in pws: req = max(req, 1)
                if ("s", 126) in pws and (I.dpp or I.kind == "mfma"): req = max(req, 1)
            if P.kind == "vmem" and P.wide_store:
                ws = set(P.wide_store)
                if I.kind == "valu" and (ws & wrv): req = max(req, 2)
                elif ws & wrv: req = max(req, 1)
            if req > dist: need = max(need, req - dist)
            dist += P.nst
            if dist > 20: break
        return need
    def _auto_wait(self, I):
        touched = set(r for r in I.rd + I.wr if r[0] in "va")
        if not touched: return
        nv = None; nl = None
        for i, e in enumerate(self.vmq):
            if e & touched: nv = len(self.vmq) - 1 - i
        for i, e in enumerate(self.lgq):
            if e & touched: nl = len(self.lgq) - 1 - i
        if nv is not None or nl is not None:
            self.wait(vm=nv, lg=nl, auto=True)
    def wait(self, vm=None, lg=None, auto=False):
        parts = []
        if vm is not None:
            if vm < len(self.vmq):
                self.vmq = self.vmq[len(self.vmq) - vm:] if vm > 0 else []
                if vm <= 63: parts.append("vmcnt(%d)" % vm)
            elif not auto:
                if vm <= 63: parts.append("vmcnt(%d)" % vm)
        if lg is not None:
            if lg < len(self.lgq):
                self.lgq = self.lgq[len(self.lgq) - lg:] if lg > 0 else []
                assert lg <= 15
                parts.append("lgkmcnt(%d)" % lg)
            elif not auto:
                parts.append("lgkmcnt(%d)" % min(lg, 15))
        if parts:
            self._raw(Ins("s_waitcnt " + " ".join(parts)))
    def vm_mark(self): return self.vm_issued
    def wait_vm_mark(self, mark):
        n = self.vm_issued - mark
        self.wait(vm=n)
    def lg_mark(self): return self.lg_issued
    def wait_lg_mark(self, mark):
        n = self.lg_issued - mark
        self.wait(lg=n)
    def _raw(self, I):
        self.out.append("  " + I.text if not I.label else I.text)
        if I.nst:
            self.hist.append(I); self.ninstr += 1
            if len(self.hist) > 40: self.hist = self.hist[-30:]
    def __call__(self, text):
        for line in text.split("\n"):
            line = line.strip()
            if not line or line.startswith(";"):
                if line: self.out.append("  " + line)
                continue
            I = Ins(line)
            if I.kind == "label":
                self.drain(); self._raw(I); continue
            if I.kind == "dir":
                self._raw(I); continue
            if I.mn == "s_branch" or I.mn.startswith("s_cbranch"):
                self.drain(keep_scc=True)
            if I.mn == "s_waitcnt":
                m = re.search(r"vmcnt\((\d+)\)", line); l = re.search(r"lgkmcnt\((\d+)\)", line)
                self.wait(vm=int(m.group(1)) if m else None, lg=int(l.group(1)) if l else None)
                if l and int(l.group(1)) == 0: self.smem_pending = False
                continue
            self._auto_wait(I)
            if I.kind == "ds" and len(self.lgq) >= 15:
                self.wait(lg=14, auto=True)
            n = self._need(I)
            if n > 0:
                self.nnops += n
                while n > 0:
                    k = min(n, 16); self._raw(Ins("s_nop %d" % (k - 1))); n -= k
            self._raw(I)
            if I.kind == "vmem":
                self.vmq.append(set(r for r in I.wr if r[0] in "va")); self.vm_issued += 1
            elif I.kind == "ds":
                self.lgq.append(set(I.wr)); self.lg_issued += 1
    def drain(self, keep_scc=False):
        need = 0; dist = 0
        for P in reversed(self.hist):
            req = 0
            if P.kind == "mfma": req = 12 if P.passes == 8 else 8
            elif P.kind == "valu":
                req = 5 if any(r[0] == "s" for r in P.wr) else (3 if P.mn.startswith("v_dot") else 2)
            elif P.kind == "salu":
                req = 1 if ("s", 124) in P.wr else 0
            elif P.kind == "vmem" and P.wide_store: req = 2
            if req > dist: need = max(need, req - dist)
            dist += P.nst
            if dist > 20: break
        self.nops(need)
    def region(self):
        return _Region(self)
    def flush_state(self):
        self.hist.append(Ins("s_nop 0"))
        self.hist[-1].nst = 0
    def nops(self, n):
        while n > 0:
            k = min(n, 16); self._raw(Ins("s_nop %d" % (k - 1))); n -= k
    def barrier_safe(self):
        self.nops(1)
    def text(self): return "\n".join(self.out) + "\n"

def merge(main, side, ratio_fn):
    out = []; si = 0
    for i, m in enumerate(main):
        out.append(m)
        k = ratio_fn(i, m)
        for _ in range(k):
            if si < len(side): out.append(side[si]); si += 1
    out += side[si:]
    return out

class _Region:
    def __init__(self, A): self.A = A
    def __enter__(self):
        A = self.A
        self.sv = ([set(e) for e in A.vmq], [set(e) for e in A.lgq], A.vm_issued, A.lg_issued)
        return self
    def __exit__(self, *x):
        A = self.A
        A.vmq, A.lgq, A.vm_issued, A.lg_issued = self.sv
        return False
```

```python
CNT   = 0
WQKVP = 0x100000
TILE33 = 33 * 1024
W13P  = 0x300000
WOP   = 0x700000
W2P   = 0x800000
XF    = [0xA00000 + i * 0x200000 for i in range(4)]
ST    = [0x1200000 + i * 0x40000 for i in range(4)]
KVP   = [0x1300000 + L * 0x200000 for L in range(2)]
OF    = [0x1700000 + L * 0x200000 for L in range(2)]
HF    = [0x1B00000 + L * 0x800000 for L in range(2)]
WS_USED = 0x2B00000
KV_HEAD = 17 * 128
KV_CU = 2 * KV_HEAD
S_PREP = 0
def S_KV(L): return 1 + 5 * L
def S_O(L): return 2 + 5 * L
def S_X1(L): return 3 + 5 * L
def S_H(L): return 4 + 5 * L
def S_X2(L): return 5 + 5 * L
def cnt_off(sid, g): return CNT + (sid * 16 + g) * 128
```

```python
from asmlib import *
from layout import *
import gen
from gen import (WS, T_SRD, sWAVE, sL, sR1, sC1, sRB, sCB, sR3, sC3, pX, pWPHI, pOUT, sLOG2E, sONE,
                 vLANE, vL16, vL16H, vWPHI, newlabel, srd, poll, signal, SPIN_LIMIT)

SLOT = 32768
SCR = 4 * SLOT
vRSTD = 12
vBX = 16
vT = 160

def lsel(A, dst, a0, a1):
    A("s_cmp_eq_u32 s%d, 0" % sL)
    A("s_mov_b32 s%d, 0x%x" % (dst, a1))
    A("s_cselect_b32 s%d, 0x%x, s%d" % (dst, a0, dst))

def wave0_poll(A, off_expr_fn, target, multi=False):
    L = newlabel("Lw0")
    A("s_cmp_lg_u32 s%d, 0" % sWAVE); A("s_cbranch_scc1 " + L)
    with A.region():
        off_expr_fn()
        poll(A, "s39", target, multi=multi)
    A(L + ":")

def cnt_sgpr(A, dst, sid0, sid1, group_sgpr):
    lsel(A, dst, cnt_off(sid0, 0), cnt_off(sid1, 0))
    A("s_lshl_b32 s37, s%d, 7" % group_sgpr)
    A("s_add_u32 s%d, s%d, s37" % (dst, dst))

def dma_slab(A, src_sgpr, lds_base, n=32, tmp=36):
    for i in range(n):
        if i % 4 == 0:
            if isinstance(lds_base, int): A("s_mov_b32 m0, %d" % (lds_base + i * 1024))
            else: A("s_add_u32 m0, %s, %d" % (lds_base, i * 1024))
            if i > 0: A("s_add_u32 s%d, s%d, 4096" % (src_sgpr, src_sgpr))
        A("buffer_load_dwordx4 v%d, s[4:7], s%d offen offset:%d sc1 lds" % (vL16, src_sgpr, (i % 4) * 1024))

def load_frags(A, dst_fn, n, src_sgpr, stride=1024):
    for i in range(n):
        if i % 4 == 0 and i > 0: A("s_add_u32 s%d, s%d, 4096" % (src_sgpr, src_sgpr))
        A("buffer_load_dwordx4 %s, v%d, s[4:7], s%d offen offset:%d sc1" % (dst_fn(i), vL16, src_sgpr, (i % 4) * 1024))

def stats_load(A, st_sgpr, base):
    for q in range(4):
        A("buffer_load_dwordx4 v[%d:%d], v%d, s[4:7], s%d offen offset:%d sc1" % (base + 4 * q, base + 4 * q + 3, vL16, st_sgpr, q * 1024))

def stats_compute(A, base):
    b = base
    for i in (2, 4, 6, 8, 10, 12, 14):
        A("v_pk_add_f32 v[%d:%d], v[%d:%d], v[%d:%d]" % (b, b + 1, b, b + 1, b + i, b + i + 1))
    A("v_mov_b32 v%d, v%d" % (b + 2, b)); A("v_mov_b32 v%d, v%d" % (b + 3, b + 1))
    A("v_permlane32_swap_b32 v%d, v%d" % (b, b + 2)); A("v_permlane32_swap_b32 v%d, v%d" % (b + 1, b + 3))
    A("v_pk_add_f32 v[%d:%d], v[%d:%d], v[%d:%d]" % (b, b + 1, b, b + 1, b + 2, b + 3))
    A("v_mul_f32 v%d, 0x3b000000, v%d" % (b, b))
    A("v_mul_f32 v%d, 0x3b000000, v%d" % (b + 1, b + 1))
    A("v_fma_f32 v%d, -v%d, v%d, v%d" % (b + 1, b, b, b + 1))
    A("v_max_f32 v%d, 0, v%d" % (b + 1, b + 1))
    A("v_add_f32 v%d, 0x3727c5ac, v%d" % (b + 1, b + 1))
    A("v_rsq_f32 v%d, v%d" % (vRSTD, b + 1))
    A("v_sub_f32 v%d, 0, v%d" % (b, b))
    A("v_cvt_pk_bf16_f32 v%d, v%d, v%d" % (vBX, b, b))
    A("v_lshlrev_b32 v%d, 16, v%d" % (b + 2, vBX))
    A("v_sub_f32 v%d, v%d, v%d" % (b + 2, b, b + 2))
    A("v_cvt_pk_bf16_f32 v%d, v%d, 0" % (vBX + 1, b + 2))
    A("v_mov_b32 v%d, v%d" % (vBX + 2, vBX)); A("v_mov_b32 v%d, v%d" % (vBX + 3, vBX + 1))

def rr(*streams):
    out = []; n = max(len(s) for s in streams)
    for i in range(n):
        for s in streams:
            if i < len(s): out.append(s[i])
    return out

def softmax2(A, P, E, M, OUT):
    mx = [M, M + 4]; mn = [M + 2, M + 6]
    st = []
    for h in range(2):
        p = P + 8 * h
        for (dst, op3, op2) in ((mx[h], "v_max3_f32", "v_max_f32"), (mn[h], "v_min3_f32", "v_min_f32")):
            st.append(["%s v%d, v%d, v%d, v%d" % (op3, dst, p, p + 1, p + 2),
                       "%s v%d, v%d, v%d, v%d" % (op3, dst, dst, p + 3, p + 4),
                       "%s v%d, v%d, v%d, v%d" % (op3, dst, dst, p + 5, p + 6),
                       "%s v%d, v%d, v%d" % (op2, dst, dst, p + 7)])
    for x in rr(*st): A(x)
    vals = [(mx[0], "v_max_f32"), (mn[0], "v_min_f32"), (mx[1], "v_max_f32"), (mn[1], "v_min_f32")]
    for i, (x, op) in enumerate(vals): A("v_mov_b32 v%d, v%d" % (M + 8 + i, x))
    for i, (x, op) in enumerate(vals): A("v_permlane32_swap_b32 v%d, v%d" % (x, M + 8 + i))
    for i, (x, op) in enumerate(vals): A("%s v%d, v%d, v%d" % (op, x, x, M + 8 + i))
    for i, (x, op) in enumerate(vals): A("v_mul_f32 v%d, s%d, v%d" % (x, sLOG2E, x))
    st = []
    for h in range(2):
        p = P + 8 * h
        for pn in range(2):
            e = E + 16 * h + 8 * pn
            m = mx[h] if pn == 0 else mn[h]
            l = []
            for i in range(4):
                if pn == 0:
                    l.append("v_pk_fma_f32 v[%d:%d], v[%d:%d], s[%d:%d], v[%d:%d] op_sel_hi:[1,1,0] neg_lo:[0,0,1] neg_hi:[0,0,1]" %
                             (e + 2 * i, e + 2 * i + 1, p + 2 * i, p + 2 * i + 1, sLOG2E, sLOG2E + 1, m, m + 1))
                else:
                    l.append("v_pk_fma_f32 v[%d:%d], v[%d:%d], s[%d:%d], v[%d:%d] op_sel_hi:[1,1,0] neg_lo:[1,0,0] neg_hi:[1,0,0]" %
                             (e + 2 * i, e + 2 * i + 1, p + 2 * i, p + 2 * i + 1, sLOG2E, sLOG2E + 1, m, m + 1))
            for i in range(8): l.append("v_exp_f32 v%d, v%d" % (e + i, e + i))
            st.append(l)
    for x in rr(*st): A(x)
    st = []
    for k in range(4):
        e = E + 8 * k; sm = M + 8 + 2 * k
        st.append(["v_pk_add_f32 v[%d:%d], v[%d:%d], v[%d:%d]" % (sm, sm + 1, e, e + 1, e + 2, e + 3),
                   "v_pk_add_f32 v[%d:%d], v[%d:%d], v[%d:%d]" % (sm, sm + 1, sm, sm + 1, e + 4, e + 5),
                   "v_pk_add_f32 v[%d:%d], v[%d:%d], v[%d:%d]" % (sm, sm + 1, sm, sm + 1, e + 6, e + 7),
                   "v_add_f32 v%d, v%d, v%d" % (sm, sm, sm + 1),
                   "v_mov_b32 v%d, v%d" % (sm + 1, sm)])
    for x in rr(*st): A(x)
    for k in range(4): A("v_permlane32_swap_b32 v%d, v%d" % (M + 8 + 2 * k, M + 9 + 2 * k))
    for k in range(4): A("v_add_f32 v%d, v%d, v%d" % (M + 8 + 2 * k, M + 8 + 2 * k, M + 9 + 2 * k))
    for k in range(4): A("v_rcp_f32 v%d, v%d" % (M + 8 + 2 * k, M + 8 + 2 * k))
    st = []
    for k in range(4):
        e = E + 8 * k; sm = M + 8 + 2 * k
        l = []
        for i in range(4):
            l.append("v_pk_mul_f32 v[%d:%d], v[%d:%d], v[%d:%d] op_sel_hi:[1,0]" % (e + 2 * i, e + 2 * i + 1, e + 2 * i, e + 2 * i + 1, sm, sm + 1))
        for i in range(4):
            l.append("v_cvt_pk_bf16_f32 v%d, v%d, v%d" % (OUT + 4 * k + i, e + 2 * i, e + 2 * i + 1))
        st.append(l)
    for x in rr(*st): A(x)

def scale_cvt(A, acc, out):
    for i in range(8):
        A("v_pk_mul_f32 v[%d:%d], v[%d:%d], v[%d:%d] op_sel_hi:[1,0]" % (acc + 2 * i, acc + 2 * i + 1, acc + 2 * i, acc + 2 * i + 1, vRSTD, vRSTD + 1))
    for i in range(8):
        A("v_cvt_pk_bf16_f32 v%d, v%d, v%d" % (out + i, acc + 2 * i, acc + 2 * i + 1))

def phi_mfma(A, bf, P):
    A("v_mfma_f32_32x32x16_bf16 v[%d:%d], v[%d:%d], v[%d:%d], 0" % (P, P + 15, vWPHI, vWPHI + 3, bf, bf + 3))
    A("v_mfma_f32_32x32x16_bf16 v[%d:%d], v[%d:%d], v[%d:%d], v[%d:%d]" % (P, P + 15, vWPHI + 4, vWPHI + 7, bf + 4, bf + 7, P, P + 15))

def load_wphi_issue(A):
    srd(A, T_SRD, pWPHI, 32 * 16 * 16 * 2)
    A("v_and_b32 v20, 15, v%d" % vLANE); A("v_lshlrev_b32 v20, 1, v20")
    A("v_lshrrev_b32 v21, 5, v%d" % vLANE); A("v_lshl_add_u32 v20, v21, 7, v20")
    A("v_bfe_u32 v21, v%d, 4, 1" % vLANE)
    A("s_lshl_b32 s20, s%d, 10" % sC1)
    for h in range(2):
        A("v_cmp_eq_u32 vcc, %d, v21" % h)
        A("v_mov_b32 v%d, 0x100000" % (22 + h))
        A("v_cndmask_b32 v%d, v%d, v20, vcc" % (22 + h, 22 + h))
        A("s_add_u32 s21, s20, %d" % (h * 512))
        for j in range(8):
            d = 8 * (j >> 2) + (j & 3)
            A("buffer_load_ushort v%d, v%d, s[8:11], s21 offen offset:%d" % (64 + 8 * h + j, 22 + h, d * 32))

def load_wphi_combine(A):
    for h in range(2):
        for dw in range(4):
            A("v_lshl_or_b32 v%d, v%d, 16, v%d" % (vWPHI + 4 * h + dw, 64 + 8 * h + 2 * dw + 1, 64 + 8 * h + 2 * dw))

def gemmA_pass(A, accs, slots, Ar, extras, first_wait_B=True):
    nt = len(accs)
    seq = [(kb, t) for kb in range(32) for t in range(nt)]
    def rd(i):
        kb, t = seq[i]
        sl = slots[t]
        addr = vL16 if sl < 2 else vL16H
        off = (sl % 2) * SLOT + kb * 1024
        r = Ar + 4 * (i % 8)
        return "ds_read_b128 v[%d:%d], v%d offset:%d" % (r, r + 3, addr, off)
    D = 6
    for i in range(min(D, len(seq))): A(rd(i))
    for i, (kb, t) in enumerate(seq):
        r = Ar + 4 * (i % 8)
        c = "0" if kb == 0 else "v[%d:%d]" % (accs[t], accs[t] + 15)
        A("v_mfma_f32_32x32x16_bf16 v[%d:%d], v[%d:%d], a[%d:%d], %s" % (accs[t], accs[t] + 15, r, r + 3, 4 * kb, 4 * kb + 3, c))
        if i + D < len(seq): A(rd(i + D))
    for t in range(nt):
        A("v_mfma_f32_32x32x16_bf16 v[%d:%d], v[%d:%d], v[%d:%d], v[%d:%d]" % (accs[t], accs[t] + 15, extras[t], extras[t] + 3, vBX, vBX + 3, accs[t], accs[t] + 15))

def P1(A, stop):
    accK, accV, accQ, P, E, Ar, M = 32, 48, 64, 80, 96, 128, 192
    exK, exV, exQ = 20, 24, 28
    Ls = newlabel("Lp1a")
    A("s_cmp_lg_u32 s%d, 0" % sL); A("s_cbranch_scc1 " + Ls)
    wave0_poll(A, lambda: A("s_mov_b32 s39, %d" % cnt_off(S_PREP, 0)), 16, multi=True)
    A("s_barrier")
    A(Ls + ":")
    A("s_mul_i32 s20, s%d, %d" % (sC1, 3 * TILE33)); A("s_add_u32 s20, s20, %d" % WQKVP)
    Ld = newlabel("Lp1d")
    A("s_cmp_eq_u32 s%d, 0" % sWAVE); A("s_cbranch_scc1 " + Ld)
    with A.region():
        A("s_sub_u32 s21, s%d, 1" % sWAVE)
        A("s_mul_i32 s22, s21, %d" % TILE33); A("s_add_u32 s22, s22, s20")
        A("s_lshl_b32 s21, s21, 15")
        dma_slab(A, 22, "s21")
    A(Ld + ":")
    dmark = A.vm_mark()
    for p, ex in enumerate((exK, exV, exQ)):
        A("s_add_u32 s22, s20, %d" % (p * TILE33 + 32768))
        A("buffer_load_dwordx4 v[%d:%d], v%d, s[4:7], s22 offen sc1" % (ex, ex + 3, vL16))
    Ls = newlabel("Lp1b")
    A("s_cmp_eq_u32 s%d, 0" % sL); A("s_cbranch_scc1 " + Ls)
    def f():
        A("s_lshl_b32 s39, s%d, 7" % sR1); A("s_add_u32 s39, s39, %d" % cnt_off(S_X2(0), 0))
    wave0_poll(A, f, 16)
    A("s_barrier")
    A(Ls + ":")
    A("s_lshl_b32 s23, s%d, 2" % sR1); A("s_add_u32 s23, s23, s%d" % sWAVE)
    lsel(A, 24, ST[0], ST[2]); A("s_lshl_b32 s25, s23, 12"); A("s_add_u32 s24, s24, s25")
    stats_load(A, 24, vT)
    lsel(A, 24, XF[0], XF[2]); A("s_lshl_b32 s25, s23, 15"); A("s_add_u32 s24, s24, s25")
    load_frags(A, lambda i: a(4 * i, 4), 32, 24)
    A.wait_vm_mark(dmark)
    A("s_barrier")
    stats_compute(A, vT)
    gemmA_pass(A, [accK, accV], [0, 1], Ar, [exK, exV])
    bk = 112
    scale_cvt(A, accK, bk)
    phi_mfma(A, bk, P)
    scale_cvt(A, accV, bk + 8)
    A("v_and_b32 v14, 31, v%d" % vLANE); A("s_lshl_b32 s26, s%d, 5" % sWAVE); A("v_add_u32 v14, s26, v14")
    A("v_lshlrev_b32 v14, 6, v14"); A("v_add_u32 v14, %d, v14" % SCR)
    A("v_lshrrev_b32 v15, 5, v%d" % vLANE)
    A("v_lshl_add_u32 v13, v15, 3, v14")
    A("v_lshl_add_u32 v14, v15, 4, v14")
    for h in range(2):
        A("ds_write_b64 v13, v[%d:%d] offset:%d" % (bk + 8 + 4 * h, bk + 9 + 4 * h, 16384 + h * 8192))
        A("ds_write_b64 v13, v[%d:%d] offset:%d" % (bk + 10 + 4 * h, bk + 11 + 4 * h, 16384 + h * 8192 + 16))
    for i in range(4): A("v_mov_b32 v%d, 0x3f803f80" % (vT + i))
    for h in range(2):
        A("ds_write_b128 v14, v[%d:%d] offset:%d" % (vT, vT + 3, 16384 + h * 8192 + 32))
    softmax2(A, P, E, M, P)
    for h in range(2):
        for pn in range(2):
            r = P + 8 * h + 4 * pn
            A("ds_write_b128 v14, v[%d:%d] offset:%d" % (r, r + 3, h * 8192 + pn * 32))
    A("s_waitcnt lgkmcnt(0)")
    A("s_barrier")
    Lk = newlabel("Lp1kv")
    A("s_cmp_ge_u32 s%d, 2" % sWAVE); A("s_cbranch_scc1 " + Lk)
    with A.region():
        A("v_lshrrev_b32 v13, 5, v%d" % vLANE); A("v_lshlrev_b32 v13, 3, v13"); A("v_bfe_u32 v15, v%d, 2, 2" % vLANE); A("v_add_u32 v13, v13, v15")
        A("v_lshlrev_b32 v13, 6, v13"); A("v_bfe_u32 v15, v%d, 4, 1" % vLANE); A("v_lshl_add_u32 v13, v15, 5, v13")
        A("v_and_b32 v15, 3, v%d" % vLANE); A("v_lshl_add_u32 v13, v15, 3, v13")
        A("s_lshl_b32 s26, s%d, 13" % sWAVE); A("s_add_u32 s26, s26, %d" % SCR); A("v_add_u32 v13, s26, v13")
        Dk = E
        def rdk(sidx):
            r = Ar + 8 * (sidx % 4)
            o = sidx * 1024
            return ["ds_read_b64_tr_b16 v[%d:%d], v13 offset:%d" % (r, r + 1, 16384 + o),
                    "ds_read_b64_tr_b16 v[%d:%d], v13 offset:%d" % (r + 2, r + 3, 16384 + o + 256),
                    "ds_read_b64_tr_b16 v[%d:%d], v13 offset:%d" % (r + 4, r + 5, o),
                    "ds_read_b64_tr_b16 v[%d:%d], v13 offset:%d" % (r + 6, r + 7, o + 256)]
        for sidx in range(3):
            for x in rdk(sidx): A(x)
        for sidx in range(8):
            r = Ar + 8 * (sidx % 4)
            c = "0" if sidx == 0 else "v[%d:%d]" % (Dk, Dk + 15)
            A("v_mfma_f32_32x32x16_bf16 v[%d:%d], v[%d:%d], v[%d:%d], %s" % (Dk, Dk + 15, r, r + 3, r + 4, r + 7, c))
            if sidx + 3 < 8:
                for x in rdk(sidx + 3): A(x)
        lsel(A, 24, KVP[0], KVP[1])
        A("s_lshl_b32 s25, s%d, 4" % sC1); A("s_add_u32 s25, s25, s%d" % sR1); A("s_mul_i32 s25, s25, %d" % KV_CU); A("s_add_u32 s24, s24, s25")
        A("s_mul_i32 s25, s%d, %d" % (sWAVE, KV_HEAD)); A("s_add_u32 s24, s24, s25")
        A("v_and_b32 v13, 31, v%d" % vLANE); A("v_lshlrev_b32 v13, 2, v13")
        A("v_lshrrev_b32 v15, 5, v%d" % vLANE); A("v_lshl_add_u32 v15, v15, 9, v13")
        for j in range(8):
            A("buffer_store_dword v%d, v15, s[4:7], s24 offen offset:%d sc1" % (Dk + j, (8 * (j >> 2) + (j & 3)) * 128))
        A("buffer_store_dword v%d, v13, s[4:7], s24 offen offset:%d sc1" % (Dk + 8, 16 * 128))
        A("s_waitcnt vmcnt(0)")
        cnt_sgpr(A, 39, S_KV(0), S_KV(1), sC1)
        signal(A, "s39")
    A(Lk + ":")
    if stop == "p1kv": return
    gemmA_pass(A, [accQ], [2], Ar, [exQ])
    scale_cvt(A, accQ, bk)
    phi_mfma(A, bk, P)
    softmax2(A, P, E, M, P)

def P2a(A, stop):
    P = 80
    def f(): cnt_sgpr(A, 39, S_KV(0), S_KV(1), sC1)
    wave0_poll(A, f, 32)
    A("s_barrier")
    lsel(A, 24, KVP[0], KVP[1])
    A("s_mul_i32 s25, s%d, %d" % (sC1, 16 * KV_CU)); A("s_add_u32 s24, s24, s25")
    A("s_lshr_b32 s25, s%d, 1" % sWAVE); A("s_mul_i32 s25, s25, %d" % KV_HEAD); A("s_add_u32 s24, s24, s25")
    A("s_and_b32 s25, s%d, 1" % sWAVE); A("s_lshl_b32 s25, s25, 6"); A("s_add_u32 s24, s24, s25")
    A("v_and_b32 v13, 31, v%d" % vLANE); A("v_min_u32 v13, 16, v13"); A("v_lshlrev_b32 v13, 7, v13")
    A("v_lshrrev_b32 v15, 5, v%d" % vLANE); A("v_lshl_add_u32 v13, v15, 5, v13")
    for r in range(16):
        b = 128 + 8 * r
        A("buffer_load_dwordx4 v[%d:%d], v13, s[4:7], s24 offen sc1" % (b, b + 3))
        A("buffer_load_dwordx4 v[%d:%d], v13, s[4:7], s24 offen offset:16 sc1" % (b + 4, b + 7))
        if r < 15: A("s_add_u32 s24, s24, %d" % KV_CU)
    acc = 96
    for r in range(1, 16):
        b = 128 + 8 * r
        for i in range(4):
            src = 128 if r == 1 else acc
            A("v_pk_add_f32 v[%d:%d], v[%d:%d], v[%d:%d]" % (acc + 2 * i, acc + 2 * i + 1, src + 2 * i, src + 2 * i + 1, b + 2 * i, b + 2 * i + 1))
    for i in range(4):
        A("v_cvt_pk_bf16_f32 v%d, v%d, v%d" % (104 + i, acc + 2 * i, acc + 2 * i + 1))
    A("s_lshl_b32 s25, s%d, 10" % sWAVE); A("s_add_u32 s25, s25, %d" % SCR); A("v_add_u32 v13, s25, v%d" % vL16)
    A("ds_write_b128 v13, v[104:107]")
    A("s_waitcnt lgkmcnt(0)")
    A("s_barrier")
    A("v_add_u32 v13, %d, v%d" % (SCR, vL16))
    for k in range(4):
        A("ds_read_b128 v[%d:%d], v13 offset:%d" % (108 + 4 * k, 111 + 4 * k, k * 1024))
    D = [32, 48]
    for h in range(2):
        A("v_mfma_f32_32x32x16_bf16 v[%d:%d], v[%d:%d], v[%d:%d], 0" % (D[h], D[h] + 15, 108 + 8 * h, 111 + 8 * h, P + 8 * h, P + 8 * h + 3))
    for h in range(2):
        A("v_mfma_f32_32x32x16_bf16 v[%d:%d], v[%d:%d], v[%d:%d], v[%d:%d]" % (D[h], D[h] + 15, 112 + 8 * h, 115 + 8 * h, P + 8 * h + 4, P + 8 * h + 7, D[h], D[h] + 15))
    for h in range(2):
        A("v_add_f32 v%d, 0x358637bd, v%d" % (D[h] + 8, D[h] + 8))
    for h in range(2):
        A("v_rcp_f32 v%d, v%d" % (D[h] + 8, D[h] + 8))
    for h in range(2):
        for i in range(4):
            A("v_pk_mul_f32 v[%d:%d], v[%d:%d], v[%d:%d] op_sel_hi:[1,0]" % (D[h] + 2 * i, D[h] + 2 * i + 1, D[h] + 2 * i, D[h] + 2 * i + 1, D[h] + 8, D[h] + 9))
        for i in range(4):
            A("v_cvt_pk_bf16_f32 v%d, v%d, v%d" % (64 + 4 * h + i, D[h] + 2 * i, D[h] + 2 * i + 1))
    lsel(A, 24, OF[0], OF[1])
    A("s_lshl_b32 s23, s%d, 2" % sR1); A("s_add_u32 s23, s23, s%d" % sWAVE); A("s_lshl_b32 s23, s23, 15"); A("s_add_u32 s24, s24, s23")
    A("s_lshl_b32 s23, s%d, 11" % sC1); A("s_add_u32 s24, s24, s23")
    for h in range(2):
        A("buffer_store_dwordx4 v[%d:%d], v%d, s[4:7], s24 offen offset:%d sc1" % (64 + 4 * h, 67 + 4 * h, vL16, h * 1024))

def finish_signal(A, sid0, sid1, group_sgpr, mark=None):
    if mark is None: A("s_waitcnt vmcnt(0)")
    else: A.wait_vm_mark(mark)
    A("s_barrier")
    L = newlabel("Lsig")
    A("s_cmp_lg_u32 s%d, 0" % sWAVE); A("s_cbranch_scc1 " + L)
    with A.region():
        cnt_sgpr(A, 39, sid0, sid1, group_sgpr)
        signal(A, "s39")
    A(L + ":")

def main_loop(A, stop):
    load_wphi_combine(A)
    A("L_layer:")
    P1(A, stop)
    if stop in ("p1kv", "p1"): return
    P2a(A, stop)
    finish_signal(A, S_O(0), S_O(1), sR1)
    if stop == "p2a": return
    import phases2
    phases2.rest(A, stop)
```

```python
from asmlib import *
from layout import *
import gen
from gen import (WS, T_SRD, sWAVE, sL, sR1, sC1, sRB, sCB, sR3, sC3, pX, pWPHI, pOUT, sLOG2E, sONE,
                 vLANE, vL16, vL16H, vWPHI, newlabel, srd, poll, signal, SPIN_LIMIT)
from phases import *

def not_wave0(A):
    L = newlabel("Lnw0")
    A("s_cmp_eq_u32 s%d, 0" % sWAVE); A("s_cbranch_scc1 " + L)
    return L

def gemmB_epilogue(A, acc, area_base_mul, area_stride, final_possible):
    A("s_mul_i32 s26, s%d, %d" % (sWAVE, area_base_mul))
    A("v_add_u32 v13, s26, v%d" % vL16)
    A("v_add_u32 v14, 0x10000, v13")
    for tau in (1, 2, 3):
        off = tau * area_stride
        ad = 13 if off + 3072 < 65536 else 14
        o2 = off if ad == 13 else off - 65536
        for q in range(4):
            r = acc + 16 * tau + 4 * q
            A("ds_write_b128 v%d, v[%d:%d] offset:%d" % (ad, r, r + 3, o2 + q * 1024))
    A("s_waitcnt lgkmcnt(0)")
    A("s_barrier")
    R = 232
    n = 0
    for tau in (1, 2, 3):
        A("s_xor_b32 s27, s%d, %d" % (sWAVE, tau))
        A("s_mul_i32 s27, s27, %d" % area_base_mul); A("s_add_u32 s27, s27, %d" % (tau * area_stride))
        A("v_add_u32 v%d, s27, v%d" % (20 + tau, vL16))
    rds = [(tau, q) for tau in (1, 2, 3) for q in range(4)]
    def rd(i):
        tau, q = rds[i]; r = R + 4 * (i % 6)
        return "ds_read_b128 v[%d:%d], v%d offset:%d" % (r, r + 3, 20 + tau, q * 1024)
    for i in range(6): A(rd(i))
    for i, (tau, q) in enumerate(rds):
        r = R + 4 * (i % 6); d = acc + 4 * q
        A("v_pk_add_f32 v[%d:%d], v[%d:%d], v[%d:%d]" % (d, d + 1, d, d + 1, r, r + 1))
        A("v_pk_add_f32 v[%d:%d], v[%d:%d], v[%d:%d]" % (d + 2, d + 3, d + 2, d + 3, r + 2, r + 3))
        if i + 6 < len(rds): A(rd(i + 6))
    for d in range(8):
        A("v_lshlrev_b32 v%d, 16, v%d" % (R + 2 * (d % 4), 224 + d)); A("v_and_b32 v%d, 0xffff0000, v%d" % (R + 2 * (d % 4) + 1, 224 + d))
        A("v_pk_add_f32 v[%d:%d], v[%d:%d], v[%d:%d]" % (acc + 2 * d, acc + 2 * d + 1, acc + 2 * d, acc + 2 * d + 1, R + 2 * (d % 4), R + 2 * (d % 4) + 1))
    for d in range(8):
        A("v_cvt_pk_bf16_f32 v%d, v%d, v%d" % (224 + d, acc + 2 * d, acc + 2 * d + 1))
    A("s_lshl_b32 s23, s%d, 1" % sRB); A("s_lshr_b32 s24, s%d, 1" % sWAVE); A("s_add_u32 s23, s23, s24")
    A("s_lshl_b32 s24, s%d, 1" % sCB); A("s_and_b32 s25, s%d, 1" % sWAVE); A("s_add_u32 s24, s24, s25")
    return

def store_x_stats(A, acc, xf_sgpr, st_sgpr):
    R = 232
    A("s_lshl_b32 s25, s23, 15"); A("s_add_u32 s25, s25, s%d" % xf_sgpr); A("s_lshl_b32 s26, s24, 11"); A("s_add_u32 s25, s25, s26")
    A("buffer_store_dwordx4 v[224:227], v%d, s[4:7], s25 offen sc1" % vL16)
    A("buffer_store_dwordx4 v[228:231], v%d, s[4:7], s25 offen offset:1024 sc1" % vL16)
    A("v_pk_mul_f32 v[%d:%d], v[%d:%d], v[%d:%d]" % (R + 2, R + 3, acc, acc + 1, acc, acc + 1))
    A("v_pk_add_f32 v[%d:%d], v[%d:%d], v[%d:%d]" % (R, R + 1, acc, acc + 1, acc + 2, acc + 3))
    A("v_pk_fma_f32 v[%d:%d], v[%d:%d], v[%d:%d], v[%d:%d]" % (R + 2, R + 3, acc + 2, acc + 3, acc + 2, acc + 3, R + 2, R + 3))
    for d in range(2, 8):
        A("v_pk_add_f32 v[%d:%d], v[%d:%d], v[%d:%d]" % (R, R + 1, R, R + 1, acc + 2 * d, acc + 2 * d + 1))
        A("v_pk_fma_f32 v[%d:%d], v[%d:%d], v[%d:%d], v[%d:%d]" % (R + 2, R + 3, acc + 2 * d, acc + 2 * d + 1, acc + 2 * d, acc + 2 * d + 1, R + 2, R + 3))
    A("v_add_f32 v%d, v%d, v%d" % (R, R, R + 1)); A("v_add_f32 v%d, v%d, v%d" % (R + 1, R + 2, R + 3))
    A("v_mov_b32 v%d, v%d" % (R + 2, R)); A("v_mov_b32 v%d, v%d" % (R + 3, R + 1))
    A("v_permlane32_swap_b32 v%d, v%d" % (R, R + 2)); A("v_permlane32_swap_b32 v%d, v%d" % (R + 1, R + 3))
    A("v_pk_add_f32 v[%d:%d], v[%d:%d], v[%d:%d]" % (R, R + 1, R, R + 1, R + 2, R + 3))
    A("s_lshl_b32 s25, s23, 12"); A("s_add_u32 s25, s25, s%d" % st_sgpr)
    A("s_and_b32 s26, s24, 7"); A("s_lshr_b32 s26, s26, 1"); A("s_lshl_b32 s26, s26, 10"); A("s_add_u32 s25, s25, s26")
    A("s_lshr_b32 s26, s24, 3"); A("s_lshl_b32 s26, s26, 9"); A("s_add_u32 s25, s25, s26")
    A("s_and_b32 s26, s24, 1"); A("s_lshl_b32 s26, s26, 3"); A("s_add_u32 s25, s25, s26")
    A("s_mov_b32 exec_hi, 0")
    A("buffer_store_dwordx2 v[%d:%d], v%d, s[4:7], s25 offen sc1" % (R, R + 1, vL16))
    A("s_mov_b64 exec, -1")

def res_load(A, xsel0, xsel1):
    A("s_lshl_b32 s23, s%d, 1" % sRB); A("s_lshr_b32 s24, s%d, 1" % sWAVE); A("s_add_u32 s23, s23, s24")
    A("s_lshl_b32 s24, s%d, 1" % sCB); A("s_and_b32 s25, s%d, 1" % sWAVE); A("s_add_u32 s24, s24, s25")
    lsel(A, 25, xsel0, xsel1)
    A("s_lshl_b32 s26, s23, 15"); A("s_add_u32 s25, s25, s26"); A("s_lshl_b32 s26, s24, 11"); A("s_add_u32 s25, s25, s26")
    A("buffer_load_dwordx4 v[224:227], v%d, s[4:7], s25 offen sc1" % vL16)
    A("buffer_load_dwordx4 v[228:231], v%d, s[4:7], s25 offen offset:1024 sc1" % vL16)

def P2b(A, stop):
    acc, Ar = 32, 96
    L = not_wave0(A)
    with A.region():
        A("s_sub_u32 s20, s%d, 1" % sWAVE); A("s_mul_i32 s20, s20, 6"); A("s_min_u32 s20, s20, 10"); A("s_lshl_b32 s20, s20, 12")
        A("s_lshl_b32 s21, s%d, 16" % sCB); A("s_add_u32 s21, s21, %d" % WOP); A("s_add_u32 s21, s21, s20")
        dma_slab(A, 21, "s20", n=24)
    A(L + ":")
    dmark = A.vm_mark()
    def f():
        A("s_lshr_b32 s36, s%d, 1" % sRB)
        cnt_sgpr(A, 39, S_O(0), S_O(1), 36)
    wave0_poll(A, f, 16)
    A("s_barrier")
    lsel(A, 20, OF[0], OF[1])
    A("s_lshl_b32 s21, s%d, 13" % sWAVE); A("s_add_u32 s20, s20, s21")
    A("s_lshr_b32 s21, s%d, 1" % sWAVE)
    for beta in range(2):
        A("s_xor_b32 s22, s21, %d" % beta); A("s_lshl_b32 s23, s%d, 1" % sRB); A("s_add_u32 s22, s22, s23"); A("s_lshl_b32 s22, s22, 15")
        A("s_add_u32 s%d, s20, s22" % (30 + beta))
    for i in range(8):
        for beta in range(2):
            if i == 4: A("s_add_u32 s%d, s%d, 4096" % (30 + beta, 30 + beta))
            r = (i * 2 + beta) * 4
            A("buffer_load_dwordx4 a[%d:%d], v%d, s[4:7], s%d offen offset:%d sc1" % (r, r + 3, vL16, 30 + beta, (i % 4) * 1024))
    res_load(A, XF[0], XF[2])
    A.wait_vm_mark(dmark)
    A("s_barrier")
    A("s_lshl_b32 s20, s%d, 14" % sWAVE); A("s_and_b32 s21, s%d, 1" % sWAVE)
    for al in range(2):
        A("s_xor_b32 s22, s21, %d" % al); A("s_lshl_b32 s22, s22, 10"); A("s_add_u32 s22, s22, s20")
        A("v_add_u32 v%d, s22, v%d" % (14 + al, vL16))
    seq = [(i, al) for i in range(8) for al in range(2)]
    def rd(n):
        i, al = seq[n]; r = Ar + 4 * (n % 8)
        return "ds_read_b128 v[%d:%d], v%d offset:%d" % (r, r + 3, 14 + al, i * 2048)
    for n in range(6): A(rd(n))
    for n, (i, al) in enumerate(seq):
        r = Ar + 4 * (n % 8)
        for beta in range(2):
            t = acc + 16 * (2 * beta + al); b = (i * 2 + beta) * 4
            c = "0" if i == 0 else "v[%d:%d]" % (t, t + 15)
            A("v_mfma_f32_32x32x16_bf16 v[%d:%d], v[%d:%d], a[%d:%d], %s" % (t, t + 15, r, r + 3, b, b + 3, c))
        if n + 6 < len(seq): A(rd(n + 6))
    gemmB_epilogue(A, acc, 16384, 4096, False)
    lsel(A, 28, XF[1], XF[3]); lsel(A, 29, ST[1], ST[3])
    store_x_stats(A, acc, 28, 29)

def p3_epilogue(acc, tmp, store_sgpr_expr):
    l = []
    G = [acc, acc + 2, acc + 8, acc + 10]; U = [acc + 4, acc + 6, acc + 12, acc + 14]
    T = [tmp + 2 * i for i in range(4)]
    for i in range(4):
        l.append("v_pk_mul_f32 v[%d:%d], v[%d:%d], v[14:15] op_sel_hi:[1,0]" % (T[i], T[i] + 1, G[i], G[i] + 1))
    for i in range(4):
        l.append("v_exp_f32 v%d, v%d" % (T[i], T[i])); l.append("v_exp_f32 v%d, v%d" % (T[i] + 1, T[i] + 1))
        l.append("v_pk_mul_f32 v[%d:%d], v[%d:%d], v[%d:%d]" % (U[i], U[i] + 1, G[i], G[i] + 1, U[i], U[i] + 1))
    for i in range(4):
        l.append("v_pk_add_f32 v[%d:%d], v[%d:%d], s[%d:%d]" % (T[i], T[i] + 1, T[i], T[i] + 1, sONE, sONE + 1))
        l.append("v_pk_mul_f32 v[%d:%d], v[%d:%d], v[20:21] op_sel_hi:[1,0]" % (U[i], U[i] + 1, U[i], U[i] + 1))
    for i in range(4):
        l.append("v_rcp_f32 v%d, v%d" % (T[i], T[i])); l.append("v_rcp_f32 v%d, v%d" % (T[i] + 1, T[i] + 1))
    for i in range(4):
        l.append("v_pk_mul_f32 v[%d:%d], v[%d:%d], v[%d:%d]" % (U[i], U[i] + 1, U[i], U[i] + 1, T[i], T[i] + 1))
    for i in range(4):
        l.append("v_cvt_pk_bf16_f32 v%d, v%d, v%d" % (tmp + 8 + i, U[i], U[i] + 1))
    l += store_sgpr_expr(tmp + 8)
    return l

def passlist(accs, slots, Ar, extras):
    nt = len(accs)
    seq = [(kb, t) for kb in range(32) for t in range(nt)]
    def rd(i):
        kb, t = seq[i]; sl = slots[t]
        addr = vL16 if sl < 2 else vL16H
        r = Ar + 4 * (i % 8)
        return "ds_read_b128 v[%d:%d], v%d offset:%d" % (r, r + 3, addr, (sl % 2) * SLOT + kb * 1024)
    D = 6
    l = [rd(i) for i in range(D)]
    for i, (kb, t) in enumerate(seq):
        r = Ar + 4 * (i % 8)
        c = "0" if kb == 0 else "v[%d:%d]" % (accs[t], accs[t] + 15)
        l.append("v_mfma_f32_32x32x16_bf16 v[%d:%d], v[%d:%d], a[%d:%d], %s" % (accs[t], accs[t] + 15, r, r + 3, 4 * kb, 4 * kb + 3, c))
        if i + D < len(seq): l.append(rd(i + D))
    for t in range(nt):
        l.append("v_mfma_f32_32x32x16_bf16 v[%d:%d], v[%d:%d], v[%d:%d], v[%d:%d]" % (accs[t], accs[t] + 15, extras[t], extras[t] + 3, vBX, vBX + 3, accs[t], accs[t] + 15))
    return l

def interleave(main, side, start=3):
    nm = sum(1 for m in main if m.startswith("v_mfma"))
    out = []; si = 0; k = 0
    for m in main:
        out.append(m)
        if m.startswith("v_mfma"):
            k += 1
            if k > start:
                rem_m = nm - k + 1
                n = -(-(len(side) - si) // rem_m)
                for _ in range(n):
                    if si < len(side): out.append(side[si]); si += 1
    out += side[si:]
    return out

def dma_list(src_sgpr, lds_imm_or_sgpr, n):
    l = []
    for i in range(n):
        if i % 4 == 0:
            if isinstance(lds_imm_or_sgpr, int): l.append("s_mov_b32 m0, %d" % (lds_imm_or_sgpr + i * 1024))
            else: l.append("s_add_u32 m0, %s, %d" % (lds_imm_or_sgpr, i * 1024))
            if i > 0: l.append("s_add_u32 s%d, s%d, 4096" % (src_sgpr, src_sgpr))
        l.append("buffer_load_dwordx4 v%d, s[4:7], s%d offen offset:%d sc1 lds" % (vL16, src_sgpr, (i % 4) * 1024))
    return l

def P3(A, stop):
    accs = [32, 48, 64]; Ar = 96; EX = 128; TMP = 160
    A("s_mul_i32 s66, s%d, %d" % (sC3, 7 * TILE33)); A("s_add_u32 s66, s66, %d" % W13P)
    L = not_wave0(A)
    with A.region():
        A("s_sub_u32 s20, s%d, 1" % sWAVE); A("s_mul_i32 s20, s20, 11"); A("s_min_u32 s20, s20, 21")
        for i in range(11):
            A("s_add_u32 s21, s20, %d" % i)
            A("s_lshr_b32 s22, s21, 3"); A("s_mul_i32 s22, s22, %d" % TILE33); A("s_and_b32 s23, s21, 7"); A("s_lshl_b32 s23, s23, 12")
            A("s_add_u32 s22, s22, s23"); A("s_add_u32 s22, s22, s66")
            A("s_lshl_b32 m0, s21, 12")
            for j in range(4):
                A("buffer_load_dwordx4 v%d, s[4:7], s22 offen offset:%d sc1 lds" % (vL16, j * 1024))
    A(L + ":")
    dmark = A.vm_mark()
    for p in range(7):
        A("s_add_u32 s22, s66, %d" % (p * TILE33 + 32768))
        A("buffer_load_dwordx4 v[%d:%d], v%d, s[4:7], s22 offen sc1" % (EX + 4 * p, EX + 4 * p + 3, vL16))
    def f(): cnt_sgpr(A, 39, S_X1(0), S_X1(1), sR3)
    wave0_poll(A, f, 16)
    A("s_barrier")
    A("s_lshl_b32 s23, s%d, 2" % sR3); A("s_add_u32 s23, s23, s%d" % sWAVE)
    lsel(A, 24, ST[1], ST[3]); A("s_lshl_b32 s25, s23, 12"); A("s_add_u32 s24, s24, s25")
    stats_load(A, 24, TMP)
    lsel(A, 24, XF[1], XF[3]); A("s_lshl_b32 s25, s23, 15"); A("s_add_u32 s24, s24, s25")
    load_frags(A, lambda i: a(4 * i, 4), 32, 24)
    lsel(A, 67, HF[0], HF[1]); A("s_mul_i32 s25, s23, %d" % (112 * 1024)); A("s_add_u32 s67, s67, s25")
    A("s_mul_i32 s25, s%d, %d" % (sC3, 7 * 1024)); A("s_add_u32 s67, s67, s25")
    A.wait_vm_mark(dmark)
    A("s_barrier")
    stats_compute(A, TMP)
    A("v_mul_f32 v14, s%d, v%d" % (sLOG2E, vRSTD)); A("v_sub_f32 v14, 0, v14"); A("v_mul_f32 v20, v%d, v%d" % (vRSTD, vRSTD))
    def storer(p):
        def fn(r):
            return ["s_add_u32 s68, s67, %d" % (p * 1024), "buffer_store_dwordx4 v[%d:%d], v%d, s[4:7], s68 offen sc1" % (r, r + 3, vL16)]
        return fn
    def wave_dma(p, slot):
        return (["s_lshl_b32 s69, s%d, 13" % sWAVE, "s_add_u32 s70, s69, s66", "s_add_u32 s70, s70, %d" % (p * TILE33), "s_add_u32 s69, s69, %d" % (slot * SLOT)]
                + dma_list(70, "s69", 8))
    ex = lambda p: EX + 4 * p
    for x in passlist([accs[0], accs[1]], [0, 1], Ar, [ex(0), ex(1)]): A(x)
    A("s_waitcnt lgkmcnt(0)"); A("s_barrier")
    side = wave_dma(4, 0) + wave_dma(5, 1) + p3_epilogue(accs[0], TMP, storer(0)) + p3_epilogue(accs[1], TMP + 16, storer(1))
    m45 = A.vm_issued + 16
    for x in interleave(passlist([accs[2]], [2], Ar, [ex(2)]), side): A(x)
    A("s_waitcnt lgkmcnt(0)"); A("s_barrier")
    side = wave_dma(6, 2) + p3_epilogue(accs[2], TMP, storer(2))
    m6 = A.vm_issued + 8
    for x in interleave(passlist([accs[0]], [3], Ar, [ex(3)]), side): A(x)
    A.wait_vm_mark(m45); A("s_barrier")
    side = p3_epilogue(accs[0], TMP + 16, storer(3))
    for x in interleave(passlist([accs[1]], [0], Ar, [ex(4)]), side): A(x)
    side = p3_epilogue(accs[1], TMP, storer(4))
    for x in interleave(passlist([accs[2]], [1], Ar, [ex(5)]), side): A(x)
    A.wait_vm_mark(m6); A("s_barrier")
    side = p3_epilogue(accs[2], TMP + 16, storer(5))
    for x in interleave(passlist([accs[0]], [2], Ar, [ex(6)]), side): A(x)
    for x in p3_epilogue(accs[0], TMP, storer(6)): A(x)

def P4(A, stop):
    acc, Ar, AR2 = 32, 96, 128
    A("s_mul_i32 s66, s%d, 229376" % sCB); A("s_add_u32 s66, s66, %d" % W2P)
    def a_regs_load():
        A("s_mul_i32 s20, s%d, 57344" % sWAVE); A("s_add_u32 s20, s20, s66"); A("s_and_b32 s21, s%d, 1" % sWAVE)
        for al in range(2):
            A("s_xor_b32 s22, s21, %d" % al); A("s_lshl_b32 s22, s22, 10"); A("s_add_u32 s%d, s20, s22" % (30 + al))
        for p in range(4, 7):
            for q in range(4):
                for al in range(2):
                    r = AR2 + ((p - 4) * 8 + q * 2 + al) * 4
                    A("s_add_u32 s22, s%d, %d" % (30 + al, p * 8192 + (q // 2) * 4096))
                    A("buffer_load_dwordx4 v[%d:%d], v%d, s[4:7], s22 offen offset:%d sc1" % (r, r + 3, vL16, (q % 2) * 2048))
    L = not_wave0(A)
    with A.region():
        A("s_sub_u32 s20, s%d, 1" % sWAVE); A("s_mul_i32 s20, s20, 6"); A("s_min_u32 s20, s20, 10")
        for i in range(6):
            A("s_add_u32 s21, s20, %d" % i)
            A("s_lshr_b32 s22, s21, 2"); A("s_and_b32 s23, s21, 3")
            A("s_mul_i32 s24, s23, 57344"); A("s_lshl_b32 s25, s22, 13"); A("s_add_u32 s24, s24, s25"); A("s_add_u32 s24, s24, s66")
            A("s_lshl_b32 s25, s22, 15"); A("s_lshl_b32 s26, s23, 13"); A("s_add_u32 s25, s25, s26")
            dma_slab(A, 24, "s25", n=8)
        a_regs_load()
    A(L + ":")
    dmark = A.vm_mark()
    def f():
        A("s_lshr_b32 s36, s%d, 1" % sRB)
        cnt_sgpr(A, 39, S_H(0), S_H(1), 36)
    Lw = newlabel("Lp4w0")
    A("s_cmp_lg_u32 s%d, 0" % sWAVE); A("s_cbranch_scc1 " + Lw)
    with A.region():
        f(); poll(A, "s39", 16)
    A(Lw + ":")
    A("s_barrier")
    Lw = newlabel("Lp4w0b")
    A("s_cmp_lg_u32 s%d, 0" % sWAVE); A("s_cbranch_scc1 " + Lw)
    with A.region():
        a_regs_load()
    A(Lw + ":")
    lsel(A, 20, HF[0], HF[1])
    A("s_mul_i32 s21, s%d, %d" % (sWAVE, 28 * 1024)); A("s_add_u32 s20, s20, s21")
    A("s_lshr_b32 s21, s%d, 1" % sWAVE)
    for beta in range(2):
        A("s_xor_b32 s22, s21, %d" % beta); A("s_lshl_b32 s23, s%d, 1" % sRB); A("s_add_u32 s22, s22, s23"); A("s_mul_i32 s22, s22, %d" % (112 * 1024))
        A("s_add_u32 s%d, s20, s22" % (30 + beta))
    for p in range(7):
        for q in range(4):
            for beta in range(2):
                r = ((p * 4 + q) * 2 + beta) * 4
                o = (7 * q + p) * 1024
                A("s_add_u32 s22, s%d, %d" % (30 + beta, o & ~4095))
                A("buffer_load_dwordx4 a[%d:%d], v%d, s[4:7], s22 offen offset:%d sc1" % (r, r + 3, vL16, o & 4095))
    res_load(A, XF[1], XF[3])
    A.wait_vm_mark(dmark)
    A("s_barrier")
    A("s_lshl_b32 s20, s%d, 13" % sWAVE); A("s_and_b32 s21, s%d, 1" % sWAVE)
    for al in range(2):
        A("s_xor_b32 s22, s21, %d" % al); A("s_lshl_b32 s22, s22, 10"); A("s_add_u32 s22, s22, s20")
        A("v_add_u32 v%d, s22, v%d" % (14 + al, vL16)); A("v_add_u32 v%d, 0x10000, v%d" % (20 + al, 14 + al))
    seq = [(p, q, al) for p in range(7) for q in range(4) for al in range(2)]
    def rd(n):
        p, q, al = seq[n]; r = Ar + 4 * (n % 8)
        ad = (14 + al) if p < 2 else (20 + al)
        return "ds_read_b128 v[%d:%d], v%d offset:%d" % (r, r + 3, ad, (p % 2) * 32768 + q * 2048)
    nl = 32
    for n in range(6): A(rd(n))
    for n, (p, q, al) in enumerate(seq):
        r = Ar + 4 * (n % 8) if p < 4 else AR2 + ((p - 4) * 8 + q * 2 + al) * 4
        for beta in range(2):
            t = acc + 16 * (2 * beta + al); b = ((p * 4 + q) * 2 + beta) * 4
            c = "0" if (p == 0 and q == 0) else "v[%d:%d]" % (t, t + 15)
            A("v_mfma_f32_32x32x16_bf16 v[%d:%d], v[%d:%d], a[%d:%d], %s" % (t, t + 15, r, r + 3, b, b + 3, c))
        if n + 6 < nl: A(rd(n + 6))
    gemmB_epilogue(A, acc, 8192, 32768, True)
    Lf, Le = newlabel("Lp4f"), newlabel("Lp4e")
    A("s_cmp_eq_u32 s%d, 1" % sL); A("s_cbranch_scc1 " + Lf)
    with A.region():
        A("s_mov_b32 s28, 0x%x" % XF[2]); A("s_mov_b32 s29, 0x%x" % ST[2])
        store_x_stats(A, acc, 28, 29)
    A("s_branch " + Le)
    A(Lf + ":")
    with A.region():
        srd(A, T_SRD, pOUT, 2048 * 512 * 2)
        for fr in range(2):
            b = 224 + 4 * fr
            A("v_permlane32_swap_b32 v%d, v%d" % (b, b + 2))
            A("v_permlane32_swap_b32 v%d, v%d" % (b + 1, b + 3))
        A("v_and_b32 v13, 31, v%d" % vLANE); A("v_lshlrev_b32 v13, 10, v13"); A("v_lshrrev_b32 v14, 5, v%d" % vLANE); A("v_lshl_add_u32 v13, v14, 4, v13")
        A("s_lshl_b32 s25, s23, 15"); A("s_lshl_b32 s26, s24, 6"); A("s_add_u32 s25, s25, s26")
        A("buffer_store_dwordx4 v[224:227], v13, s[8:11], s25 offen")
        A("buffer_store_dwordx4 v[228:231], v13, s[8:11], s25 offen offset:32")
    A(Le + ":")

def rest(A, stop):
    P2b(A, stop)
    A("s_lshr_b32 s71, s%d, 1" % sRB)
    finish_signal(A, S_X1(0), S_X1(1), 71)
    if stop == "p2b": return
    P3(A, stop)
    finish_signal(A, S_H(0), S_H(1), sR3)
    if stop == "p3": return
    P4(A, stop)
    A("s_cmp_eq_u32 s%d, 1" % sL); A("s_cbranch_scc1 L_fin")
    A("s_lshr_b32 s71, s%d, 1" % sRB)
    finish_signal(A, S_X2(0), S_X2(0), 71)
    if stop == "p4":
        A("L_fin:"); return
    A("s_mov_b32 s%d, 1" % sL)
    A("s_branch L_layer")
    A("L_fin:")
```

```python
import sys, math
sys.path.insert(0, "gen")
from asmlib import *
from layout import *

KN = "interleave_layers__linear_kernel_hedgehog__glu_gated_swiglu__prompt_kernel"
STOP = None
SPIN_LIMIT = 200000

WS = 4
T_SRD = 8
sWAVE, sL, sR1, sC1, sRB, sCB, sR3, sC3 = 12, 13, 14, 15, 16, 17, 18, 19
pX, pWQKV, pWPHI, pWO, pBX, pW1, pW3, pW2, pOUT, pDBG, pWS = 40, 42, 44, 46, 48, 50, 52, 54, 56, 58, 60
sLOG2E = 62
sONE = 64
vTID, vLANE, vL16, vL16H = 0, 1, 2, 3
vWPHI = 4

_lbl = [0]
def newlabel(p="L"):
    _lbl[0] += 1
    return "%s_%d" % (p, _lbl[0])

def srd(A, base, ptr, size):
    A("s_mov_b32 s%d, s%d" % (base, ptr))
    A("s_mov_b32 s%d, s%d" % (base + 1, ptr + 1))
    A("s_mov_b32 s%d, 0x%x" % (base + 2, size))
    A("s_mov_b32 s%d, 0x20000" % (base + 3))

def poll(A, off_sgpr_or_imm, target, vt=214, multi=False):
    Lp, Ld = newlabel("Lpoll"), newlabel("Lpolld")
    if multi:
        A("v_and_b32 v%d, 15, v%d" % (vt, vLANE))
        A("v_lshlrev_b32 v%d, 7, v%d" % (vt, vt))
        A("v_add_u32 v%d, %s, v%d" % (vt, off_sgpr_or_imm, vt))
    else:
        A("v_mov_b32 v%d, %s" % (vt, off_sgpr_or_imm))
    A("s_mov_b32 s38, 0")
    A(Lp + ":")
    A("s_add_u32 s38, s38, 1")
    A("s_cmp_gt_u32 s38, %d" % SPIN_LIMIT)
    A("s_cbranch_scc1 " + Ld)
    A("buffer_load_dword v%d, v%d, s[4:7], 0 offen sc1" % (vt + 1, vt))
    A("s_waitcnt vmcnt(0)")
    A("v_cmp_gt_u32 vcc, %d, v%d" % (target, vt + 1))
    A("s_cbranch_vccnz " + Lp)
    A(Ld + ":")

def signal(A, off, vt=214):
    A("v_mov_b32 v%d, %s" % (vt, off))
    A("v_mov_b32 v%d, 1" % (vt + 1))
    A("s_mov_b64 exec, 1")
    A("buffer_atomic_add v%d, v%d, s[4:7], 0 offen sc1" % (vt + 1, vt))
    A("s_mov_b64 exec, -1")

def prologue(A):
    A("s_cmp_ge_u32 s2, 256")
    A("s_cbranch_scc1 L_end")
    A("s_load_dwordx16 s[40:55], s[0:1], 0")
    A("s_load_dwordx4 s[56:59], s[0:1], 64")
    A("s_load_dwordx2 s[60:61], s[0:1], 80")
    A("v_and_b32 v%d, 63, v0" % vLANE)
    A("v_lshrrev_b32 v12, 6, v0")
    A("v_lshlrev_b32 v%d, 4, v%d" % (vL16, vLANE))
    A("v_readfirstlane_b32 s%d, v12" % sWAVE)
    A("v_add_u32 v%d, 0x10000, v%d" % (vL16H, vL16))
    A("s_and_b32 s20, s2, 7")
    A("s_lshr_b32 s21, s2, 3")
    A("s_lshr_b32 s22, s20, 1"); A("s_lshl_b32 s22, s22, 2"); A("s_lshr_b32 s23, s21, 3"); A("s_add_u32 s%d, s22, s23" % sR1)
    A("s_and_b32 s22, s20, 1"); A("s_lshl_b32 s22, s22, 3"); A("s_and_b32 s23, s21, 7"); A("s_add_u32 s%d, s22, s23" % sC1)
    A("s_lshl_b32 s22, s20, 2"); A("s_lshr_b32 s23, s21, 3"); A("s_add_u32 s%d, s22, s23" % sRB)
    A("s_and_b32 s%d, s21, 7" % sCB)
    A("s_lshr_b32 s22, s20, 2"); A("s_lshl_b32 s22, s22, 3"); A("s_lshr_b32 s23, s21, 2"); A("s_add_u32 s%d, s22, s23" % sR3)
    A("s_and_b32 s22, s20, 3"); A("s_lshl_b32 s22, s22, 2"); A("s_and_b32 s23, s21, 3"); A("s_add_u32 s%d, s22, s23" % sC3)
    A("s_mov_b32 s%d, 0x3fb8aa3b" % sLOG2E); A("s_mov_b32 s%d, 0x3fb8aa3b" % (sLOG2E + 1))
    A("s_mov_b32 s%d, 1.0" % sONE); A("s_mov_b32 s%d, 1.0" % (sONE + 1))
    A("s_mov_b32 s%d, 0" % sL)
    A("s_waitcnt lgkmcnt(0)")
    srd(A, WS, pWS, 0x10000000)

def prep(A):
    Lx, Lst, Ldone, Lunit = "L_prep_x", "L_prep_st", "L_prep_done", "L_prep_unit"
    A("s_cmp_eq_u32 s%d, 2" % sWAVE); A("s_cbranch_scc1 " + Lx)
    A("s_cmp_eq_u32 s%d, 3" % sWAVE); A("s_cbranch_scc1 " + Lst)
    A("s_lshl_b32 s20, s2, 1"); A("s_add_u32 s20, s20, s%d" % sWAVE)
    Lw13, Lwo, Lw2 = "L_u_w13", "L_u_wo", "L_u_w2"
    A("s_cmp_ge_u32 s20, 96"); A("s_cbranch_scc1 " + Lw13)
    srd(A, T_SRD, pWQKV, 512 * 3072)
    A("s_lshr_b32 s30, s20, 2")
    A("s_and_b32 s31, s20, 3")
    A("s_mov_b32 s21, 3072")
    A("s_mul_i32 s22, s31, %d" % (128 * 3072)); A("s_lshl_b32 s32, s30, 7"); A("s_add_u32 s22, s22, s32")
    A("s_lshr_b32 s32, s30, 3")
    A("s_add_u32 s33, s32, 2"); A("s_cmp_ge_u32 s33, 3"); A("s_cbranch_scc0 L_u_q1"); A("s_sub_u32 s33, s33, 3"); A("L_u_q1:")
    A("s_lshl_b32 s34, s30, 1"); A("s_and_b32 s34, s34, 15")
    A("s_mul_i32 s34, s34, 3"); A("s_add_u32 s34, s34, s33")
    A("s_mul_i32 s34, s34, %d" % TILE33); A("s_add_u32 s34, s34, %d" % WQKVP)
    A("s_lshl_b32 s35, s31, 13"); A("s_add_u32 s23, s34, s35")
    A("s_mov_b32 s24, 1024"); A("s_mov_b32 s25, %d" % (3 * TILE33)); A("s_mov_b32 s26, 8"); A("s_mov_b32 s27, 0"); A("s_mov_b32 s28, 1")
    A("s_branch L_u_ext")
    A(Lw13 + ":")
    A("s_cmp_ge_u32 s20, 320"); A("s_cbranch_scc1 " + Lwo)
    A("s_cmp_ge_u32 s20, 208"); A("s_cbranch_scc1 L_u_w3")
    srd(A, T_SRD, pW1, 512 * 3584)
    A("s_sub_u32 s20, s20, 96"); A("s_mov_b32 s27, 1"); A("s_branch L_u_w13c")
    A("L_u_w3:")
    srd(A, T_SRD, pW3, 512 * 3584)
    A("s_sub_u32 s20, s20, 208"); A("s_mov_b32 s27, 2")
    A("L_u_w13c:")
    A("s_lshr_b32 s30, s20, 2"); A("s_and_b32 s31, s20, 3")
    A("s_mov_b32 s21, 3584")
    A("s_mul_i32 s22, s31, %d" % (128 * 3584)); A("s_lshl_b32 s32, s30, 7"); A("s_add_u32 s22, s22, s32")
    A("s_mul_i32 s34, s30, %d" % (4 * TILE33)); A("s_add_u32 s34, s34, %d" % W13P)
    A("s_lshl_b32 s35, s31, 13"); A("s_add_u32 s23, s34, s35")
    A("s_mov_b32 s24, 1024"); A("s_mov_b32 s25, %d" % (2 * TILE33)); A("s_mov_b32 s26, 8"); A("s_mov_b32 s28, 1")
    A("L_u_ext:")
    A("s_lshr_b32 s35, s31, 1"); A("s_lshl_b32 s35, s35, 9"); A("s_add_u32 s29, s34, s35")
    A("s_and_b32 s35, s31, 1"); A("s_lshl_b32 s35, s35, 3"); A("s_add_u32 s29, s29, s35"); A("s_add_u32 s29, s29, 32768")
    A("s_branch " + Lunit)
    A(Lwo + ":")
    A("s_cmp_ge_u32 s20, 352"); A("s_cbranch_scc1 " + Lw2)
    srd(A, T_SRD, pWO, 512 * 1024)
    A("s_sub_u32 s20, s20, 320"); A("s_lshr_b32 s30, s20, 2"); A("s_and_b32 s31, s20, 3")
    A("s_mov_b32 s21, 1024")
    A("s_lshl_b32 s22, s31, 17"); A("s_lshl_b32 s32, s30, 7"); A("s_add_u32 s22, s22, s32")
    A("s_lshl_b32 s23, s30, 16"); A("s_lshl_b32 s32, s31, 14"); A("s_add_u32 s23, s23, s32"); A("s_add_u32 s23, s23, %d" % WOP)
    A("s_mov_b32 s24, 2048"); A("s_mov_b32 s25, 1024"); A("s_mov_b32 s26, 8"); A("s_mov_b32 s27, 0"); A("s_mov_b32 s28, 0"); A("s_mov_b32 s29, 0")
    A("s_branch " + Lunit)
    A(Lw2 + ":")
    A("s_cmp_ge_u32 s20, 480"); A("s_cbranch_scc1 " + Ldone)
    srd(A, T_SRD, pW2, 1792 * 1024)
    A("s_sub_u32 s20, s20, 352"); A("s_lshr_b32 s30, s20, 3"); A("s_and_b32 s31, s20, 7")
    A("s_mov_b32 s21, 1024")
    A("s_mul_i32 s22, s30, %d" % (112 * 1024)); A("s_lshl_b32 s32, s31, 7"); A("s_add_u32 s22, s22, s32")
    A("s_mul_i32 s23, s31, 229376"); A("s_lshr_b32 s32, s30, 2"); A("s_mul_i32 s32, s32, 57344"); A("s_add_u32 s23, s23, s32")
    A("s_and_b32 s32, s30, 3"); A("s_lshl_b32 s32, s32, 11"); A("s_add_u32 s23, s23, s32"); A("s_add_u32 s23, s23, %d" % W2P)
    A("s_mov_b32 s24, 8192"); A("s_mov_b32 s25, 1024"); A("s_mov_b32 s26, 7"); A("s_mov_b32 s27, 0"); A("s_mov_b32 s28, 0"); A("s_mov_b32 s29, 0")
    A(Lunit + ":")
    A("v_and_b32 v20, 15, v1"); A("v_bfe_u32 v21, v1, 4, 1"); A("v_lshrrev_b32 v22, 5, v1")
    A("v_lshrrev_b32 v23, 3, v1"); A("v_mul_lo_u32 v23, v23, s21"); A("v_and_b32 v24, 7, v1"); A("v_lshl_add_u32 v23, v24, 4, v23")
    A("s_lshl_b32 s36, s%d, 14" % sWAVE)
    A("s_lshl_b32 s37, s21, 3")
    A("s_mov_b32 s39, s22")
    for i in range(16):
        A("s_add_u32 m0, s36, %d" % (i * 1024))
        A("buffer_load_dwordx4 v23, s[8:11], s39 offen lds")
        if i < 15: A("s_add_u32 s39, s39, s37")
    A("v_bfe_u32 v24, v1, 2, 2"); A("v_lshl_add_u32 v24, v22, 2, v24"); A("v_lshlrev_b32 v24, 7, v24")
    A("v_lshl_add_u32 v24, v21, 5, v24"); A("v_and_b32 v25, 3, v1"); A("v_lshl_add_u32 v24, v25, 3, v24"); A("v_add_u32 v24, s36, v24")
    A("v_and_b32 v26, 31, v1"); A("v_lshlrev_b32 v26, 4, v26")
    A("s_cmp_eq_u32 s27, 0"); A("s_cbranch_scc1 L_u_plain")
    A("v_lshrrev_b32 v25, 3, v20"); A("v_lshlrev_b32 v25, 4, v25"); A("v_and_b32 v26, 7, v20"); A("v_add_u32 v26, v26, v25")
    A("s_sub_u32 s38, s27, 1"); A("s_lshl_b32 s38, s38, 3"); A("v_add_u32 v26, s38, v26"); A("v_lshlrev_b32 v26, 4, v26")
    A("s_mov_b32 s38, %d" % TILE33); A("v_mul_lo_u32 v25, v21, s38"); A("v_add_u32 v26, v26, v25")
    A("L_u_plain:")
    A("v_lshl_add_u32 v27, v22, 9, v26")
    A("v_mov_b32 v28, 0"); A("v_mov_b32 v29, 0")
    A("s_waitcnt vmcnt(0)")
    A("s_mov_b32 s39, s23")
    for kb in range(8):
        if kb == 7:
            A("s_cmp_lt_u32 s26, 8"); A("s_cbranch_scc1 L_u_kbdone")
        for nt in range(2):
            r = 32 + 8 * (kb & 1) + 4 * nt + 16 * 0
            r = 32 + ((kb * 2 + nt) % 4) * 4
            A("ds_read_b64_tr_b16 v[%d:%d], v24 offset:%d" % (r, r + 1, kb * 2048 + nt * 64))
            A("ds_read_b64_tr_b16 v[%d:%d], v24 offset:%d" % (r + 2, r + 3, kb * 2048 + nt * 64 + 1024))
            for d in range(4):
                A("v_dot2c_f32_bf16 v%d, 0x3f803f80, v%d" % (28 + nt, r + d))
            if nt == 0: A("s_mov_b32 s38, s39")
            else: A("s_add_u32 s38, s39, s25")
            A("buffer_store_dwordx4 v[%d:%d], v27, s[4:7], s38 offen sc1" % (r, r + 3))
        A("s_add_u32 s39, s39, s24")
    A("L_u_kbdone:")
    A("s_cmp_eq_u32 s28, 0"); A("s_cbranch_scc1 " + Ldone)
    for nt in range(2):
        c = 28 + nt
        A("v_mov_b32 v30, v%d" % c)
        A("v_permlane32_swap_b32 v%d, v30" % c)
        A("v_add_f32 v%d, v%d, v30" % (c, c))
        A("v_cvt_pk_bf16_f32 v31, v%d, v%d" % (c, c))
        A("v_lshlrev_b32 v30, 16, v31")
        A("v_sub_f32 v30, v%d, v30" % c)
        A("v_cvt_pk_bf16_f32 v%d, v%d, v30" % (48 + 2 * nt, c))
        A("v_and_b32 v%d, 0xffff, v31" % (49 + 2 * nt))
    A("s_mov_b32 exec_hi, 0")
    A("buffer_store_dwordx2 v[48:49], v26, s[4:7], s29 offen sc1")
    A("s_add_u32 s29, s29, s25")
    A("buffer_store_dwordx2 v[50:51], v26, s[4:7], s29 offen sc1")
    A("s_mov_b64 exec, -1")
    A("s_branch " + Ldone)
    A(Lx + ":")
    A.vmq = []; A.lgq = []
    srd(A, T_SRD, pX, 2048 * 1024)
    A("s_lshl_b32 s20, s2, 13")
    for i in range(8):
        A("s_mov_b32 m0, %d" % (32768 + i * 1024))
        A("s_add_u32 s21, s20, %d" % (i * 1024))
        A("buffer_load_dwordx4 v%d, s[8:11], s21 offen lds" % vL16)
    A("v_and_b32 v20, 7, v1"); A("v_bfe_u32 v21, v1, 3, 1"); A("v_lshrrev_b32 v22, 4, v1")
    A("v_lshlrev_b32 v23, 10, v20"); A("v_lshl_add_u32 v23, v22, 5, v23"); A("v_lshl_add_u32 v23, v21, 3, v23"); A("v_add_u32 v23, 32768, v23")
    A("v_lshl_add_u32 v24, v21, 5, v20"); A("v_lshlrev_b32 v24, 4, v24"); A("v_lshl_add_u32 v24, v22, 10, v24")
    A("s_lshr_b32 s22, s2, 2"); A("s_lshl_b32 s22, s22, 15"); A("s_and_b32 s23, s2, 3"); A("s_lshl_b32 s23, s23, 7")
    A("s_add_u32 s22, s22, s23"); A("s_add_u32 s22, s22, %d" % XF[0])
    A("s_waitcnt vmcnt(0)")
    for i in range(8):
        r = 32 + 4 * (i % 4)
        A("ds_read_b64 v[%d:%d], v23 offset:%d" % (r, r + 1, i * 128))
        A("ds_read_b64 v[%d:%d], v23 offset:%d" % (r + 2, r + 3, i * 128 + 16))
        A("s_add_u32 s23, s22, %d" % (i * 4096))
        A("buffer_store_dwordx4 v[%d:%d], v24, s[4:7], s23 offen sc1" % (r, r + 3))
    A("s_branch " + Ldone)
    A(Lst + ":")
    A.vmq = []; A.lgq = []
    A("s_cmp_lg_u32 s2, 0"); A("s_cbranch_scc1 L_st_nz")
    A("v_lshlrev_b32 v20, 7, v1"); A("v_mov_b32 v21, 0")
    for i in range(4):
        A("s_mov_b32 s20, %d" % (CNT + i * 8192))
        A("buffer_store_dword v21, v20, s[4:7], s20 offen sc1")
    A("s_waitcnt vmcnt(0)")
    srd(A, T_SRD, pDBG, 256)
    A("v_mov_b32 v20, 0"); A("v_mov_b32 v21, 1")
    A("s_mov_b64 exec, 1")
    A("buffer_store_dword v21, v20, s[8:11], 0 offen sc1")
    A("s_mov_b64 exec, -1")
    A("L_st_nz:")
    srd(A, T_SRD, pX, 2048 * 1024)
    A("v_and_b32 v20, 7, v1"); A("v_lshrrev_b32 v21, 3, v1")
    A("v_lshlrev_b32 v22, 10, v20"); A("v_lshl_add_u32 v22, v21, 4, v22")
    A("s_lshl_b32 s20, s2, 13")
    for i in range(8):
        A("buffer_load_dwordx4 v[%d:%d], v22, s[8:11], s20 offen offset:%d" % (32 + 4 * i, 35 + 4 * i, i * 128))
    A("v_mov_b32 v24, 0"); A("v_mov_b32 v25, 0")
    for i in range(32):
        A("v_dot2c_f32_bf16 v24, 0x3f803f80, v%d" % (32 + i))
        A("v_dot2c_f32_bf16 v25, v%d, v%d" % (32 + i, 32 + i))
    for x in (24, 25):
        A("v_add_f32_dpp v%d, v%d, v%d row_ror:8 row_mask:0xf bank_mask:0xf" % (x, x, x))
    for x in (24, 25):
        A("v_mov_b32 v26, v%d" % x); A("v_permlane16_swap_b32 v%d, v26" % x); A("v_add_f32 v%d, v%d, v26" % (x, x))
        A("v_mov_b32 v26, v%d" % x); A("v_permlane32_swap_b32 v%d, v26" % x); A("v_add_f32 v%d, v%d, v26" % (x, x))
    A("v_cmp_eq_u32 vcc, 0, v21")
    A("v_cndmask_b32 v28, 0, v24, vcc"); A("v_cndmask_b32 v29, 0, v25, vcc"); A("v_mov_b32 v30, 0"); A("v_mov_b32 v31, 0")
    A("v_and_b32 v26, 3, v21"); A("v_lshlrev_b32 v26, 10, v26"); A("v_lshrrev_b32 v27, 2, v21"); A("v_lshl_add_u32 v27, v27, 5, v20")
    A("v_lshl_add_u32 v26, v27, 4, v26")
    A("s_lshr_b32 s22, s2, 2"); A("s_lshl_b32 s22, s22, 12"); A("s_and_b32 s23, s2, 3"); A("s_lshl_b32 s23, s23, 7")
    A("s_add_u32 s22, s22, s23"); A("s_add_u32 s22, s22, %d" % ST[0])
    A("buffer_store_dwordx4 v[28:31], v26, s[4:7], s22 offen sc1")
    A(Ldone + ":")
    A("s_waitcnt vmcnt(0) lgkmcnt(0)")
    A.vmq = []; A.lgq = []
    A("s_barrier")
    A("s_cmp_lg_u32 s%d, 0" % sWAVE); A("s_cbranch_scc1 L_prep_sig")
    with A.region():
        srd(A, T_SRD, pDBG, 256)
        A("v_mov_b32 v20, 0"); A("s_mov_b32 s38, 0")
        A("L_prep_zp:")
        A("s_add_u32 s38, s38, 1"); A("s_cmp_gt_u32 s38, %d" % SPIN_LIMIT); A("s_cbranch_scc1 L_prep_zd")
        A("buffer_load_dword v21, v20, s[8:11], 0 offen sc1")
        A("s_waitcnt vmcnt(0)")
        A("v_cmp_eq_u32 vcc, 0, v21"); A("s_cbranch_vccnz L_prep_zp")
        A("L_prep_zd:")
        A("s_and_b32 s20, s2, 15"); A("s_lshl_b32 s20, s20, 7"); A("s_add_u32 s20, s20, %d" % cnt_off(S_PREP, 0))
        signal(A, "s20")
    A("L_prep_sig:")

def epilogue(A):
    A("L_end:")
    A("s_endpgm")

def header(lds):
    return ("; @launch grid=(256,1,1) block=(256,1,1) lds=%d\n" % lds +
            '.amdgcn_target "amdgcn-amd-amdhsa--gfx950"\n.text\n.globl %s\n.p2align 8\n.type %s,@function\n%s:\n' % (KN, KN, KN))
def footer():
    return """.section .rodata,"a"
.p2align 6
.amdhsa_kernel %s
  .amdhsa_next_free_vgpr 512
  .amdhsa_next_free_sgpr 102
  .amdhsa_accum_offset 256
  .amdhsa_group_segment_fixed_size 0
  .amdhsa_kernarg_size 88
  .amdhsa_user_sgpr_count 2
  .amdhsa_user_sgpr_kernarg_segment_ptr 1
  .amdhsa_system_sgpr_workgroup_id_x 1
.end_amdhsa_kernel
""" % KN

if __name__ == "__main__":
    out = sys.argv[1]
    stop = sys.argv[2] if len(sys.argv) > 2 else None
    A = Asm()
    prologue(A)
    import phases
    phases.load_wphi_issue(A)
    prep(A)
    if stop != "prep":
        phases.main_loop(A, stop)
    A("s_waitcnt vmcnt(0) lgkmcnt(0)")
    epilogue(A)
    open(out, "w").write(header(163840) + A.text() + footer())
    print("instrs", A.ninstr, "nops", A.nnops)
```
